```python
import torch

def _softmax(x, axis=-1):
    return torch.softmax(x, dim=axis)
def _gelu(x):
    return torch.nn.functional.gelu(x, approximate="tanh")
def _silu(x):
    return torch.nn.functional.silu(x)
def _sigmoid(x):
    return torch.sigmoid(x)
def _layernorm(x, axis=-1, eps=1e-5):
    m = x.mean(dim=axis, keepdim=True)
    v = x.var(dim=axis, keepdim=True, unbiased=False)
    return (x - m) / torch.sqrt(v + eps)
def _scatter_add(tgt, idx, src, axis=0):
    return tgt.clone().index_add_(axis, idx, src)
def _segment_sum(src, seg, n):
    out = torch.zeros((n,) + src.shape[1:], dtype=src.dtype)
    return out.index_add_(0, seg, src)
def _pad(x, pw):
    flat = tuple(v for pair in reversed(pw) for v in pair)
    return torch.nn.functional.pad(x, flat)

kernel_name = 'sequential_preLN__ssm_conv_s4__dense_activation_relu__prompt'

def setup_inputs():

    _w = (lambda a: (lambda t: t.to(torch.bfloat16) if t.is_floating_point() else t)(torch.as_tensor(a)))
    def _A_setup():
        B, L, D, N = 1, 2048, 512, 128
        A_re = -(lambda _x: torch.exp(torch.as_tensor(_x)))((lambda *s: torch.randn(*s, dtype=torch.bfloat16) * 6.4)(D, N))
        A_im = torch.pi * (lambda *s: torch.randn(*s, dtype=torch.bfloat16) * 0.05)(D, N)
        B_re = (lambda *s: torch.randn(*s, dtype=torch.bfloat16) * 0.05)(D, N)
        B_im = (lambda *s: torch.randn(*s, dtype=torch.bfloat16) * 0.05)(D, N)
        C_re = (lambda *s: torch.randn(*s, dtype=torch.bfloat16) * 0.05)(D, N)
        C_im = (lambda *s: torch.randn(*s, dtype=torch.bfloat16) * 0.05)(D, N)
        log_dt = (lambda *s: torch.randn(*s, dtype=torch.bfloat16) * 0.05)(D) * 0.5 - 4.0
        Dskip = (lambda *s: torch.randn(*s, dtype=torch.bfloat16) * 0.05)(D)
        return {
            "u": _w((lambda *s: torch.randn(*s, dtype=torch.bfloat16) * 0.05)(B, L, D)),
            "A_re": _w(A_re),
            "A_im": _w(A_im),
            "B_re": _w(B_re),
            "B_im": _w(B_im),
            "C_re": _w(C_re),
            "C_im": _w(C_im),
            "log_dt": _w(log_dt),
            "Dskip": _w(Dskip),
        }
    _A_in = _A_setup()

    def _B_setup():
        B, S, D, Dff = 1, 2048, 512, 1792
        return {
            "x": _w((lambda *s: torch.randn(*s, dtype=torch.bfloat16) * 0.05)(B, S, D)),
            "w1": _w((lambda *s: torch.randn(*s, dtype=torch.bfloat16) * 0.05)(D, Dff)),
            "w2": _w((lambda *s: torch.randn(*s, dtype=torch.bfloat16) * 0.05)(Dff, D)),
        }
    _B_in = _B_setup()

    return {
        "A_u": _A_in["u"],
        "A_A_re": _A_in["A_re"],
        "A_A_im": _A_in["A_im"],
        "A_B_re": _A_in["B_re"],
        "A_B_im": _A_in["B_im"],
        "A_C_re": _A_in["C_re"],
        "A_C_im": _A_in["C_im"],
        "A_log_dt": _A_in["log_dt"],
        "A_Dskip": _A_in["Dskip"],
        "B_x": _B_in["x"],
        "B_w1": _B_in["w1"],
        "B_w2": _B_in["w2"],
    }

def reference(A_u, A_A_re, A_A_im, A_B_re, A_B_im, A_C_re, A_C_im, A_log_dt, A_Dskip, B_x, B_w1, B_w2):
    def _A_ref(u, A_re, A_im, B_re, B_im, C_re, C_im, log_dt, Dskip):
        Bsz, L, D = u.shape
        dt = torch.exp(log_dt)[:, None]
        A = A_re + 1j * A_im
        Bc = B_re + 1j * B_im
        Cc = C_re + 1j * C_im
        logdA = dt * A
        dB = dt * Bc
        l = (lambda x, dt: x.to(dt))(torch.arange(L), A_re.dtype)
        P = torch.exp(logdA[:, :, None] * l[None, None, :])
        K = torch.einsum("dn,dnl,dn->dl", Cc, P, dB).real
        L2 = 2 * L
        Kp = _pad(K, ((0, 0), (0, L)))
        up = (lambda x, *d: x.permute(*d))(u, 0, 2, 1)
        up = _pad(up, ((0, 0), (0, 0), (0, L)))
        Kf = (lambda x, axes=(-2,-1): torch.fft.rfft2(x.float(), dim=axes))(Kp[:, None, :], axes=(-2, -1))
        Uf = (lambda x, axes=(-2,-1): torch.fft.rfft2(x.float(), dim=axes))(up[:, :, None, :], axes=(-2, -1))
        Yf = Uf * Kf[None, :, :, :]
        y = (lambda x, s, axes=(-2,-1): torch.fft.irfft2(x, s=s, dim=axes).to(torch.bfloat16))(Yf, (1, L2), axes=(-2, -1))[:, :, 0, :L]
        y = (lambda x, *d: x.permute(*d))(y, 0, 2, 1) + u * Dskip[None, None, :]
        return y

    def _B_ref(x, w1, w2):
        h = torch.einsum("bsd,df->bsf", x, w1)
        zero = torch.zeros_like(h)
        h = torch.maximum(h, zero)
        return torch.einsum("bsf,fd->bsd", h, w2)

    x = A_u
    h = x + _A_ref(_layernorm(x, axis=-1), A_A_re, A_A_im, A_B_re, A_B_im, A_C_re, A_C_im, A_log_dt, A_Dskip)
    h2 = h + _B_ref(_layernorm(h, axis=-1), B_w1, B_w2)
    return h2
```

```python
import sys, os, struct
NAME = "sequential_preLN__ssm_conv_s4__dense_activation_relu__prompt"
PROF = bool(os.environ.get("PROF"))
OPT = set(os.environ.get("OPT", "").split(","))
WSC = "" if "plainw" in OPT else "sc1"
HSC = "" if "plainh" in OPT else "sc1"

import re
class Asm:
    def __init__(self):
        self.L = []; self.uid = 0; self.bg = []
        self.q = {"lgkm": [], "vm": []}
    def __call__(self, s, tag=None):
        if isinstance(s, tuple): s, tag = s
        for l in s.split("\n"):
            l = l.strip()
            if not l: continue
            self.L.append(l if l.endswith(":") else "    " + l)
            if l.startswith("ds_"): self.q["lgkm"].append(tag)
            elif l.startswith(("global_", "buffer_")): self.q["vm"].append(tag)
            elif l.startswith("s_waitcnt"):
                for key, nm in (("lgkm", "lgkmcnt"), ("vm", "vmcnt")):
                    m = re.search(nm + r"\((\d+)\)", l)
                    if m:
                        n = int(m.group(1))
                        if len(self.q[key]) > n: self.q[key] = self.q[key][len(self.q[key]) - n:]
    def need(self, *tags):
        parts = []
        for key, nm, mx in (("vm", "vmcnt", 63), ("lgkm", "lgkmcnt", 15)):
            q = self.q[key]
            idx = [i for i, t in enumerate(q) if t in tags]
            if idx:
                parts.append(f"{nm}({min(len(q) - 1 - max(idx), mx)})")
        if parts: self("s_waitcnt " + " ".join(parts))
    def snap(self): return {k: list(v) for k, v in self.q.items()}
    def restore(self, st): self.q = {k: list(v) for k, v in st.items()}
    def tick(self, n=1):
        for _ in range(n):
            while self.bg and callable(self.bg[0]): self.bg.pop(0)()
            if self.bg: self(self.bg.pop(0))
    def label(self, base):
        self.uid += 1
        return f"L_{base}_{self.uid}"
    def text(self): return "\n".join(self.L) + "\n"

def vr(a, n=1): return f"v{a}" if n == 1 else f"v[{a}:{a+n-1}]"
def ar(a, n=1): return f"a{a}" if n == 1 else f"a[{a}:{a+n-1}]"
def f32hex(x): return "0x%08x" % struct.unpack("<I", struct.pack("<f", x))[0]

WS_STATS = 0
WS_EPOCH = 0x8000
WS_XCC   = 0x9000
WS_FH2   = 0x20000
FSH = int(os.environ.get('FSH', '6'))
WS_FH    = 0x10000
WS_FH1   = 0xB000
WS_HT    = 1 << 20
WS_H1    = 4 << 20
WS_XT    = 12 << 20
WS_WP    = 16 << 20
WS_PROF  = 24 << 20

S_X, S_ARE, S_AIM, S_BRE, S_BIM, S_CRE, S_CIM, S_LDT = 16, 18, 20, 22, 24, 26, 28, 30
S_DSK, S_BX, S_W1, S_W2, S_OUT, S_DBG, S_WS = 32, 34, 36, 38, 40, 42, 44
S_WAVE, S_XCD, S_SLOT, S_C0, S_RB, S_J = 46, 47, 48, 49, 50, 51
SRD_W, SRD_HT = 52, 56
S_SL0, S_SL2 = 60, 61
S_H1B = 62
S_ROT, S_WCOL, S_SO = 13, 14, 15
S_MTB = 3
S_CHK = 34
S_LOC = 100
S_XCC = 101
S_TAG, S_LDTV, S_DSKV, S_GW, S_SPIN, S_CH = 4, 5, 6, 7, 8, 9
S_PC = 10
S_DS = 12
WSP = f"s[{S_WS}:{S_WS+1}]"
SPIN_MAX = 1 << 18

V_TR0, V_TR1, V_L16, V_T16 = 250, 251, 252, 253
V_WV = 240
V_ST = 244
V_ROW, V_COL = 248, 249

TROW = 544
L_TAB = 0
CS = 4384
L_CPY = 0
L_KD = 70144
KD_STRIDE = 7744
L_U = 70144
L_XT = L_U + 2 * 4608
L_HT = 0
L_S2 = 65536
L_S0 = 98304
L_ST2 = L_S2 + 3 * 8192
LDS_TOTAL = 163840

NST = 14
STAMPSET = os.environ.get("PROF", "").split(",")
def stamp(A, name):
    name = str(name)
    if PROF and name in STAMPSET:
        n = STAMPSET.index(name)
        assert n < NST
        A(f"{'s_memtime' if 'cyc' in OPT else 's_memrealtime'} s[{72+2*n}:{73+2*n}]")
def stamp_flush(A):
    if PROF and "amp" in OPT:
        A("s_waitcnt vmcnt(0)")
        stamp(A, "end")
        A("s_waitcnt lgkmcnt(0)")
        A(f"s_cmp_lg_u32 s{S_GW}, 400")
        A("s_cbranch_scc1 L_END")
        A("s_sub_u32 s64, s74, s72")
        A("s_mul_i32 s64, s64, %s" % os.environ.get("AMP", "10"))
        A("s_min_u32 s64, s64, 100000")
        A("s_memrealtime s[66:67]")
        A("s_waitcnt lgkmcnt(0)")
        A("L_AMP:")
        A("s_memrealtime s[68:69]")
        A("s_waitcnt lgkmcnt(0)")
        A("s_sub_u32 s65, s68, s66")
        A("s_cmp_lt_u32 s65, s64")
        A("s_cbranch_scc1 L_AMP")
        return
    if PROF:
        A("s_waitcnt vmcnt(0)")
        stamp(A, "end")
        A("s_waitcnt lgkmcnt(0)")
        A("s_lshl_b32 s64, s2, 8")
        A(f"s_lshl_b32 s65, s{S_WAVE}, 6")
        A("s_add_u32 s64, s64, s65")
        A(f"s_add_u32 s64, s64, {WS_PROF}")
        A("v_mov_b32 v1, s64")
        for n in range(NST):
            A(f"v_mov_b32 v2, s{72+2*n}")
            A(f"global_store_dword v1, v2, {WSP} offset:{4*n}")
        A(f"v_mov_b32 v2, s{S_SPIN}")
        A(f"global_store_dword v1, v2, {WSP} offset:56")
        A(f"s_and_b32 s64, s{S_CHK}, 2")
        A(f"s_or_b32 s64, s64, s{S_LOC}")
        A("v_mov_b32 v2, s64")
        A(f"global_store_dword v1, v2, {WSP} offset:60")
        if "dbg" in OPT:
            A("v_mov_b32 v1, 0")
            A("s_mov_b64 exec, 1")
            A("s_not_b32 s64, s72")
            A("v_mov_b32 v2, s64")
            A(f"global_atomic_umax v1, v2, s[{S_DBG}:{S_DBG+1}] offset:60")
            for n in range(NST):
                A(f"v_mov_b32 v2, s{72+2*n}")
                A(f"global_atomic_umax v1, v2, s[{S_DBG}:{S_DBG+1}] offset:{4*n}")
            A("s_getreg_b32 s64, hwreg(HW_REG_XCC_ID)")
            A("s_and_b32 s65, s2, 7")
            A("s_xor_b32 s64, s64, s65")
            A("s_lshl_b32 s64, 1, s64")
            A("v_mov_b32 v2, s64")
            A(f"global_atomic_or v1, v2, s[{S_DBG}:{S_DBG+1}] offset:56")

def ln_finish(A, vs, vq, vt, vt2):
    A(f"v_fma_f32 v{vq}, -v{vs}, v{vs}, v{vq}")
    A(f"v_max_f32 v{vq}, 0, v{vq}")
    A(f"v_cvt_pk_bf16_f32 v{vs}, v{vs}, v{vq}")
    A(f"v_and_b32 v{vt}, 0xffff0000, v{vs}")
    A(f"v_add_f32 v{vt}, {f32hex(1e-5)}, v{vt}")
    A(f"v_cvt_pk_bf16_f32 v{vt}, v{vt}, v{vt}")
    A(f"v_and_b32 v{vt}, 0xffff0000, v{vt}")
    A(f"v_sqrt_f32 v{vt}, v{vt}")
    A(f"v_mov_b32 v{vt2}, 0xffff")
    A(f"v_cvt_pk_bf16_f32 v{vt}, v{vt}, v{vt}")
    A(f"v_bfi_b32 v{vs}, v{vt2}, v{vs}, v{vt}")

def cmul(A, d, x, y):
    A(f"v_pk_mul_f32 {vr(d,2)}, {vr(x,2)}, {vr(y,2)} op_sel:[0,0] op_sel_hi:[0,1]")
    A(f"v_pk_fma_f32 {vr(d,2)}, {vr(x,2)}, {vr(y,2)}, {vr(d,2)} op_sel:[1,1,0] op_sel_hi:[1,0,1] neg_lo:[1,0,0]")

def spin_guard(A, lretry):
    ldone = A.label("spin_done")
    A(f"s_cbranch_vccz {ldone}")
    A(f"s_add_u32 s{S_SPIN}, s{S_SPIN}, 1")
    A(f"s_cmp_lt_u32 s{S_SPIN}, {SPIN_MAX}")
    A(f"s_cbranch_scc1 {lretry}")
    A(f"{ldone}:")

def flag_store(A, wsoff_sgpr_expr_lines, vt, vt2):
    pass

def w_unit(u, slot, stride, nunits):
    out = []
    sb = S_SL2 if slot == 2 else S_SL0
    for hf in range(2):
        off = (8192 if slot == 1 else 0) + 4096 * hf
        pre = f"s_add_u32 m0, s{sb}, {off}\ns_add_u32 s{S_SO}, s{S_WCOL}, {(64*u+32*hf)*stride}\n"
        for i in range(4):
            out.append((pre if i == 0 else "") + f"buffer_load_dwordx4 v{V_WV+i}, s[{SRD_W}:{SRD_W+3}], s{S_SO} offen offset:{1024*i} lds")
    tg = ("U" if nunits == 8 else "V") + str(u)
    return [(x, tg) for x in out]
U = lambda u: w_unit(u, u & 1, 3584, 8)
def u_step(A, u):
    stamp(A, f"u{u}a")
    A.need(f"U{u}")
    stamp(A, f"u{u}b")
    for l in w_tr(u, u & 1): A(l)
    A.bg += [lambda: A.need(f"tU{u}")] + U(u + 2)

W2V = 128
def w2reg(dt, s, n=4, o=0):
    if s < 12: return vr(W2V + 8 * s + 4 * dt + o, n)
    return ar(dt * 128 + 4 * (s - 12) + o, n)
def w_tr(u, slot, mts=(0, 1), w2=False):
    out = []
    for k in range(4):
        for mt in mts:
            for h in range(2):
                va = V_ST + (2 if slot == 2 else 0) + mt
                off = (8192 if slot == 1 else 0) + (16 * k + 8 * h) * 128
                dst = w2reg(mt, 4 * u + k, 2, 2 * h) if w2 else ar(mt * 128 + 4 * (4 * u + k) + 2 * h, 2)
                out.append((f"ds_read_b64_tr_b16 {dst}, v{va} offset:{off}", ("tV" if w2 else "tU") + str(u)))
    return out

def st_addr(A, flip_sgpr=None):
    for mt, src in ((0, V_TR0), (1, V_TR1)):
        if flip_sgpr is not None:
            A(f"v_xor_b32 v{V_ST+mt}, s{flip_sgpr}, v{src}")
            A(f"v_add_u32 v{V_ST+2+mt}, s{S_SL2}, v{V_ST+mt}")
            A(f"v_add_u32 v{V_ST+mt}, s{S_SL0}, v{V_ST+mt}")
        else:
            A(f"v_add_u32 v{V_ST+mt}, s{S_SL0}, v{src}")
            A(f"v_add_u32 v{V_ST+2+mt}, s{S_SL2}, v{src}")

def one_lane_store(A, va, vd, off=0, sc="sc1"):
    A("s_mov_b64 exec, 1")
    A(f"global_store_dword v{va}, v{vd}, {WSP} offset:{off} {sc}")
    A("s_mov_b64 exec, -1")

def phase0(A):
    A("s_cmp_ge_u32 s2, 256")
    A("s_cbranch_scc1 L_END")
    A("s_load_dwordx16 s[16:31], s[0:1], 0")
    A("s_load_dwordx2 s[44:45], s[0:1], 112")
    A("s_load_dwordx8 s[32:39], s[0:1], 64")
    A("s_load_dwordx4 s[40:43], s[0:1], 96")
    A(f"s_getpc_b64 s[{S_PC}:{S_PC+1}]")
    if "fullpf" in OPT:
        A("v_lshlrev_b32 v3, 7, v0")
    else:
        A("s_lshl_b32 s64, s2, 2")
        A("s_and_b32 s64, s64, 96")
        A("s_sub_u32 s64, s64, 64")
        A("v_and_b32 v3, 0xc0, v0")
        A("v_lshl_add_u32 v3, v3, 1, s64")
        A("v_and_b32 v2, 31, v0")
        A("v_cmp_gt_u32 vcc, 64, v0")
        A("v_add_u32 v3, v3, v2")
        A("s_nop 0")
        A("v_cndmask_b32 v3, v3, v0, vcc")
        A("v_lshlrev_b32 v3, 7, v3")
    A("v_min_u32 v3, L_CODE_END-L_CODE_BEGIN-256, v3")
    A(f"global_load_dword v34, v3, s[{S_PC}:{S_PC+1}]")
    stamp(A, 0)
    A("s_lshl_b32 s64, s2, 13")
    A("v_lshrrev_b32 v1, 5, v0")
    A("v_and_b32 v2, 31, v0")
    A("v_lshlrev_b32 v2, 4, v2")
    A("v_lshl_add_u32 v2, v1, 10, v2")
    A("v_add_u32 v2, s64, v2")
    A("v_and_b32 v3, 3, v0")
    A("v_lshl_add_u32 v3, v3, 11, s64")
    A("v_and_b32 v35, 0xfc, v0")
    A("v_lshl_add_u32 v3, v35, 2, v3")
    A("v_lshrrev_b32 v1, 6, v0")
    A(f"s_lshr_b32 s{S_SLOT}, s2, 3")
    A(f"v_readfirstlane_b32 s{S_WAVE}, v1")
    A(f"s_and_b32 s{S_XCD}, s2, 7")
    A(f"s_lshl_b32 s{S_C0}, s{S_XCD}, 6")
    A(f"s_lshl_b32 s65, s{S_SLOT}, 1")
    A(f"s_add_u32 s{S_C0}, s{S_C0}, s65")
    A(f"s_lshl_b32 s65, s{S_C0}, 8")
    A("v_lshl_add_u32 v36, v0, 1, s65")
    A(f"s_lshl_b32 s65, s{S_C0}, 1")
    A("s_waitcnt lgkmcnt(0)")
    A(f"global_load_dwordx4 v[4:7], v2, s[{S_X}:{S_X+1}]")
    A(f"global_load_dwordx4 v[8:11], v2, s[{S_X}:{S_X+1}] offset:512")
    A(f"global_load_dwordx4 v[200:203], v3, s[{S_X}:{S_X+1}]")
    A(f"global_load_dwordx4 v[204:207], v3, s[{S_X}:{S_X+1}] offset:1024", "x")
    A(f"s_load_dword s{S_TAG}, {WSP}, {WS_EPOCH}")
    A(f"s_load_dword s{S_LDTV}, s[{S_LDT}:{S_LDT+1}], s65")
    A(f"s_load_dword s{S_DSKV}, s[{S_DSK}:{S_DSK+1}], s65")
    stamp(A, 1)
    for i, p in enumerate((S_ARE, S_AIM, S_BRE, S_BIM, S_CRE, S_CIM)):
        A(f"global_load_ushort v{28+i}, v36, s[{p}:{p+1}]", "par")
    A("v_and_b32 v2, 63, v0")
    A(f"v_lshlrev_b32 v{V_L16}, 4, v2")
    A(f"s_lshl_b32 s{S_RB}, s{S_XCD}, 2")
    A(f"s_lshr_b32 s64, s{S_SLOT}, 3")
    A(f"s_add_u32 s{S_RB}, s{S_RB}, s64")
    A(f"s_and_b32 s{S_J}, s{S_SLOT}, 7")
    A(f"s_lshl_b32 s{S_GW}, s2, 2")
    A(f"s_add_u32 s{S_GW}, s{S_GW}, s{S_WAVE}")
    A(f"s_lshr_b32 s{S_CH}, s{S_WAVE}, 1")
    A(f"s_mov_b32 s{S_SPIN}, 0")
    A(f"s_mov_b32 s{SRD_W}, s{S_W1}")
    A(f"s_mov_b32 s{SRD_W+1}, s{S_W1+1}")
    A(f"s_mov_b32 s{SRD_W+2}, {512*1792*2}")
    A(f"s_mov_b32 s{SRD_W+3}, 0x20000")
    A(f"s_and_b32 s64, s{S_J}, 1")
    A(f"s_lshl_b32 s{S_MTB}, s{S_WAVE}, 1")
    A(f"s_add_u32 s{S_MTB}, s{S_MTB}, s64")
    A(f"s_cmp_eq_u32 s{S_MTB}, 7")
    A(f"s_cselect_b32 s{S_MTB}, 0, s{S_MTB}")
    A(f"s_mul_i32 s{S_WCOL}, s{S_J}, 448")
    A(f"s_lshl_b32 s64, s{S_MTB}, 6")
    A(f"s_add_u32 s{S_WCOL}, s{S_WCOL}, s64")
    A(f"s_lshl_b32 s{S_SL0}, s{S_WAVE}, 14")
    A(f"s_add_u32 s{S_SL0}, s{S_SL0}, {L_S0}")
    A(f"s_lshl_b32 s{S_SL2}, s{S_WAVE}, 13")
    A(f"s_add_u32 s{S_SL2}, s{S_SL2}, {L_S2}")
    A(f"v_bfe_u32 v{V_ROW}, v0, 3, 3")
    A(f"v_bfe_u32 v{V_COL}, v0, 4, 1")
    A(f"v_lshlrev_b32 v{V_COL}, 2, v{V_COL}")
    A(f"v_xor_b32 v{V_COL}, v{V_COL}, v0")
    A(f"v_and_b32 v{V_COL}, 7, v{V_COL}")
    A(f"v_lshlrev_b32 v{V_COL}, 4, v{V_COL}")
    A(f"v_mul_u32_u24 v{V_WV}, 3584, v{V_ROW}")
    A(f"v_add_u32 v{V_WV}, v{V_WV}, v{V_COL}")
    A(f"s_cmp_eq_u32 s{S_WAVE}, 3")
    A("s_cselect_b32 s64, 64, 0")
    A(f"v_and_b32 v37, s64, v{V_COL}")
    A(f"v_lshl_add_u32 v{V_WV}, v37, 24, v{V_WV}")
    for i in range(1, 4):
        A(f"v_add_u32 v{V_WV+i}, {i*(8*3584-1024)}, v{V_WV}")
    A.bg = U(0) + U(1)
    A(f"s_getreg_b32 s{S_XCC}, hwreg(HW_REG_XCC_ID)")
    A(f"s_add_u32 s{SRD_HT}, s{S_WS}, {WS_HT}")
    A(f"s_addc_u32 s{SRD_HT+1}, s{S_WS+1}, 0")
    A(f"s_mov_b32 s{SRD_HT+2}, {512*2048*2}")
    A(f"s_mov_b32 s{SRD_HT+3}, 0x20000")
    if PROF:
        for n in range(2, NST): A(f"s_mov_b32 s{72+2*n}, 0")

NEARLY = 8
EARLY = {0: (), 2: (2, 6), 4: (0, 2, 4, 6), 8: tuple(range(8))}[NEARLY]
def phase1_addr(A):
    stamp(A, "a0")
    t = 1
    A(f"v_bfe_u32 v{V_TR0}, v0, 5, 1")
    A(f"v_lshlrev_b32 v{V_TR0}, 9, v{V_TR0}")
    A(f"v_bfe_u32 v{t}, v0, 2, 2")
    A(f"v_lshl_add_u32 v{V_TR0}, v{t}, 7, v{V_TR0}")
    A(f"v_bfe_u32 v{t}, v0, 3, 1")
    A(f"v_lshl_add_u32 v{V_TR0}, v{t}, 6, v{V_TR0}")
    A(f"v_bfe_u32 v{t}, v0, 4, 1")
    A(f"v_lshl_add_u32 v{V_TR0}, v{t}, 5, v{V_TR0}")
    A(f"v_and_b32 v{t}, 3, v0")
    A(f"v_lshl_add_u32 v{V_TR0}, v{t}, 3, v{V_TR0}")
    A(f"v_xor_b32 v{V_TR1}, 64, v{V_TR0}")
    st_addr(A)
    A("s_lshl_b32 s64, s2, 6")
    A(f"s_add_u32 s65, s64, {WS_H1}")
    A("v_and_b32 v35, 0xfc, v0")
    A("v_mul_u32_u24 v35, 28672, v35")
    A("v_and_b32 v3, 3, v0")
    A("v_lshl_add_u32 v3, v3, 4, s65")
    A("v_add_u32 v224, v3, v35")
    for i in range(1, 4): A(f"v_add_u32 v{224+i}, {28672*i}, v224")
    A("v_lshrrev_b32 v2, 5, v0")
    A("v_lshl_add_u32 v2, v2, 3, s64")
    A(f"s_add_u32 s65, s{S_C0}, s{S_CH}")
    A("s_lshl_b32 s65, s65, 12")
    A(f"s_and_b32 s66, s{S_WAVE}, 1")
    A("s_lshl_b32 s67, s66, 9")
    A("s_add_u32 s65, s65, s67")
    A(f"s_add_u32 s65, s65, {WS_HT}")
    A("s_lshl_b32 s67, s66, 10")
    A("s_sub_u32 s67, 1536, s67")
    A("v_and_b32 v228, 15, v0")
    A("v_lshl_add_u32 v228, v228, 4, s65")
    A("v_bfe_u32 v3, v0, 5, 1")
    A("v_lshl_add_u32 v228, v3, 8, v228")
    A("v_bfe_u32 v3, v0, 4, 1")
    A("v_mad_u32_u24 v228, v3, s67, v228")
    for r in range(4): A(f"v_mov_b32 v{232+r}, -1")
    A(f"s_mul_i32 s65, s{S_C0}, 14336")
    A(f"s_mul_i32 s66, s{S_WAVE}, 3072")
    A("s_add_u32 s65, s65, s66")
    A(f"s_add_u32 s65, s65, {WS_H1 + 16384}")
    A(f"v_min_u32 v229, {23*16}, v{V_L16}")
    A("v_lshl_add_u32 v229, v229, 3, s65")
    A("v_lshlrev_b32 v56, 3, v0")
    A("v_sub_u32 v56, 2047, v56")
    A("v_cvt_f32_i32 v56, v56")
    A(f"s_mov_b32 s64, {L_KD+32}")
    for i in range(0, 16, 2):
        a, b = 40 + i, 41 + i
        A(f"v_add_f32 v{a}, {f32hex(-float(i))}, v56")
        A(f"v_add_f32 v{b}, {f32hex(-float(i+1))}, v56")
        A(f"v_cvt_pk_bf16_f32 v{a}, v{a}, v{b}")
        A(f"v_and_b32 v{b}, 0xffff0000, v{a}")
        A(f"v_lshlrev_b32 v{a}, 16, v{a}")
        for k in (a, b):
            if k == 55: continue
            A(f"v_cvt_i32_f32 v{k}, v{k}")
            A(f"v_ashrrev_i32 v57, 3, v{k}")
            A(f"v_lshl_add_u32 v{k}, v{k}, 1, s64")
            A(f"v_lshl_add_u32 v{k}, v57, 2, v{k}")
        A.tick(2)
    A("v_mov_b32 v56, 0\nv_mov_b32 v57, 0\nv_mov_b32 v58, 0\nv_mov_b32 v59, 0")
    A(f"v_lshlrev_b32 v{V_T16}, 4, v0")
    A(f"v_add_u32 v{V_T16}, {L_KD}, v{V_T16}")
    A("v_cmp_gt_u32 vcc, 2, v0")
    A("s_and_saveexec_b64 s[66:67], vcc")
    A(f"ds_write_b128 v{V_T16}, v[56:59] offset:0")
    A(f"ds_write_b128 v{V_T16}, v[56:59] offset:{KD_STRIDE}")
    A("s_mov_b64 exec, s[66:67]")
    stamp(A, "a1")
    A("s_waitcnt lgkmcnt(0)")
    stamp(A, "a2")
    A(f"s_add_u32 s{S_TAG}, s{S_TAG}, 0x1e3779b9")
    A(f"s_bitset1_b32 s{S_TAG}, 31")
    for i in range(4):
        A(f"v_mov_b32 v{211+4*i}, s{S_TAG}\nv_mov_b32 v{210+4*i}, 0")
    A(f"s_lshl_b32 s65, s{S_CH}, 4")
    A(f"s_lshr_b32 s66, s{S_LDTV}, s65")
    A("s_lshl_b32 s66, s66, 16")
    A(f"s_lshr_b32 s{S_DS}, s{S_DSKV}, s65")
    A(f"s_lshl_b32 s{S_DS}, s{S_DS}, 16")
    A(f"v_mov_b32 v56, {f32hex(1.4426950408889634)}")
    A("v_mul_f32 v55, s66, v56")
    A("v_exp_f32 v55, v55")
    A("v_mov_b32 v1, 0x3f803f80")
    A("v_cvt_pk_bf16_f32 v55, v55, v55")
    A("v_and_b32 v55, 0xffff0000, v55")

PREPOS = os.environ.get("PREPOS", "gr"); POIPOS = os.environ.get("POIPOS", "po")
def preread(A): A(f"global_load_dword v230, v229, {WSP} sc1")
def poison(A):
    A(f"global_store_dwordx4 v228, v[232:235], {WSP} sc1", "poi")
    A(f"global_store_dwordx4 v228, v[232:235], {WSP} offset:2048 sc1", "poi")
def phase2_stats(A):
    A.need("x")
    stamp(A, 2)
    for i in range(4):
        A(f"v_mov_b32 v{208+4*i}, v{200+i}")
        A(f"v_mov_b32 v{209+4*i}, v{204+i}")
        A(f"global_store_dwordx4 v{224+i}, {vr(208+4*i,4)}, {WSP} sc1")
    if PREPOS == "xt": preread(A)
    if POIPOS == "xt": poison(A)
    A("v_dot2_f32_bf16 v12, v4, v1, 0")
    A("v_dot2_f32_bf16 v13, v4, v4, 0")
    for r in range(5, 12):
        A(f"v_dot2_f32_bf16 v12, v{r}, v1, v12")
        A(f"v_dot2_f32_bf16 v13, v{r}, v{r}, v13")
    A("s_nop 2")
    for dpp in ("quad_perm:[1,0,3,2] row_mask:0xf", "quad_perm:[2,3,0,1] row_mask:0xf", "row_half_mirror row_mask:0xf",
                "row_mirror row_mask:0xf", "row_bcast:15 row_mask:0xa"):
        A(f"v_add_f32_dpp v12, v12, v12 {dpp} bank_mask:0xf")
        A(f"v_add_f32_dpp v13, v13, v13 {dpp} bank_mask:0xf")
        A("s_nop 0")
    A(f"v_mul_f32 v12, {f32hex(1/512)}, v12")
    A(f"v_mul_f32 v13, {f32hex(1/512)}, v13")
    ln_finish(A, 12, 13, 14, 15)
    A(f"v_mov_b32 v13, s{S_TAG}")
    A("s_mov_b32 exec_lo, 0x10000\ns_mov_b32 exec_hi, 0x10000")
    A(f"global_store_dwordx2 v2, v[12:13], {WSP} sc1")
    A("s_mov_b64 exec, -1")

def phase3_pack(A):
    stamp(A, "b0")
    l = A.label("noxcc")
    A.need("par")
    A(f"s_cmp_lg_u32 s{S_WAVE}, 0")
    A(f"s_cbranch_scc1 {l}")
    A(f"s_lshl_b32 s64, s{S_RB}, 6")
    A(f"s_lshl_b32 s65, s{S_J}, 3")
    A("s_add_u32 s64, s64, s65")
    A(f"s_add_u32 s64, s64, {WS_XCC}")
    A("v_mov_b32 v2, s64")
    A(f"v_mov_b32 v12, s{S_XCC}")
    A("s_mov_b64 exec, 1")
    A.L.append(f"    global_store_dwordx2 v2, v[12:13], {WSP} sc1")
    A("s_mov_b64 exec, -1")
    A(f"{l}:")
    if PREPOS == "gr": preread(A)
    if POIPOS == "gr": poison(A)
    stamp(A, "b1")

UPOS = int(os.environ.get("UPOS", "44"))
def phase4_kgen(A):
    P = 28
    for i in range(6):
        A(f"v_lshlrev_b32 v{P+i}, 16, v{P+i}")
    A(f"v_mul_f32 v{P}, v55, v{P}")
    A(f"v_mul_f32 v{P+1}, v55, v{P+1}")
    A(f"v_mul_f32 v{P+2}, v55, v{P+2}")
    A(f"v_mul_f32 v{P+3}, v55, v{P+3}")
    A(f"v_mul_f32 v{P}, v56, v{P}")
    A(f"v_mul_f32 v{P+1}, 0.15915494, v{P+1}")
    A("v_and_b32 v37, 127, v0")
    A(f"s_mul_i32 s65, s{S_CH}, {64*TROW}")
    A("v_lshl_add_u32 v37, v37, 2, s65")
    zp = lambda k: 60 + 2 * k
    W, W2 = 92, 94
    Zp = lambda k: 96 + 2 * k
    A(f"v_mul_f32 v20, {f32hex(16.0)}, v{P}")
    A(f"v_mul_f32 v21, {f32hex(16.0)}, v{P+1}")
    A(f"v_mul_f32 v22, {f32hex(256.0)}, v{P}")
    A(f"v_mul_f32 v23, {f32hex(256.0)}, v{P+1}")
    for dst, sa, sb, e in ((zp(1), P, P + 1, 24), (W, 20, 21, 25), (Zp(1), 22, 23, 26)):
        A(f"v_exp_f32 v{e}, v{sa}")
        A(f"v_cos_f32 v{dst}, v{sb}")
        A(f"v_sin_f32 v{dst+1}, v{sb}")
    cmul(A, 114, P + 4, P + 2)
    for dst, e in ((zp(1), 24), (W, 25), (Zp(1), 26)):
        A(f"v_mul_f32 v{dst}, v{e}, v{dst}")
        A(f"v_mul_f32 v{dst+1}, v{e}, v{dst+1}")
    tmpi = [0]
    def put(row, reg, neg=False):
        t = 122 + (tmpi[0] % 6); tmpi[0] += 1
        A(f"v_cvt_pk_bf16_f32 v{t}, v{reg}, {'-' if neg else ''}v{reg+1}")
        A(f"ds_write_b32 v37, v{t} offset:{L_TAB + row*TROW}")
        if tmpi[0] == UPOS: u_step(A, 0); u_step(A, 1)
        elif tmpi[0] > UPOS + 3: A.tick()
    A("v_mov_b32 v121, 0x3f80")
    A(f"ds_write_b32 v37, v121 offset:{L_TAB}")
    cmul(A, 116, 114, W)
    cmul(A, W2, W, W)
    put(1, zp(1)); put(48, 114, True); put(16, Zp(1)); put(49, 116, True)
    jobsZ = [(zp(k), zp(k // 2), zp(k - k // 2), k) for k in range(2, 16)]
    jobsZZ = [(Zp(k), Zp(k // 2), Zp(k - k // 2), k) for k in range(2, 9)]
    ZZrow = {2: 24, 3: 28, 4: 32, 5: 34, 6: 36, 7: 38, 8: 40}
    cur = [114, 116]; alt = [118, 58]
    bj = 2; zi = 0; zzi = 0
    while bj < 16 or zi < len(jobsZ) or zzi < len(jobsZZ):
        done = []
        if zi < len(jobsZ):
            d, x, y, k = jobsZ[zi]; zi += 1
            cmul(A, d, x, y); done.append((k, d, False))
        if bj < 16:
            p = bj & 1
            cmul(A, alt[p], cur[p], W2); cur[p], alt[p] = alt[p], cur[p]
            done.append((48 + bj, cur[p], True)); bj += 1
        if zzi < len(jobsZZ):
            d, x, y, k = jobsZZ[zzi]; zzi += 1
            cmul(A, d, x, y); done.append((ZZrow[k], d, False))
        for row, reg, neg in done: put(row, reg, neg)
    prods = [(16 + i, 1, 2 * i) for i in range(1, 8)]
    prods += [(24 + i, 2, 4 * i) for i in range(1, 4)] + [(28 + i, 3, 4 * i) for i in range(1, 4)]
    prods += [(33 + 2 * h, 4 + h, 8) for h in range(4)]
    tr = [114, 116, 118, 58]
    pend = []
    for idx, (row, a, b) in enumerate(prods):
        t = tr[idx % 4]
        cmul(A, t, Zp(a), zp(b))
        pend.append((row, t))
        if len(pend) == 2:
            r0, t0 = pend.pop(0); put(r0, t0)
    for r0, t0 in pend: put(r0, t0)
    A("v_and_b32 v8, 15, v0")
    A(f"v_mul_u32_u24 v8, {TROW}, v8")
    A("v_and_b32 v9, 48, v0")
    A("v_add3_u32 v8, v8, v9, s65")
    stamp(A, "b2")
    A("s_waitcnt lgkmcnt(0)")
    A("s_barrier")
    stamp(A, 3)

def poll1_addr(A):
    A(f"s_mul_i32 s64, s{S_C0}, 14336")
    A(f"s_add_u32 s64, s64, {WS_H1 + 4096}")
    A("v_lshl_add_u32 v200, v0, 4, s64")
    A("v_add_u32 v201, 8192, v200")
    A("v_lshlrev_b32 v202, 4, v0")
    A("v_add_u32 v202, 4096, v202")
    A("v_add_u32 v203, 8192, v202")

def poll1_loads(A):
    for i in range(4):
        A(f"global_load_dwordx4 {vr(128+4*i,4)}, v{200 + i//2}, {WSP} offset:{-4096 if i%2==0 else 0} sc1")
    for i in range(4):
        A(f"global_load_dwordx4 {vr(144+4*i,4)}, v{202 + i//2}, {WSP} offset:{-4096 if i%2==0 else 0} sc1", "poll")

def phase5_kmfma(A):
    lodd = A.label("kg_odd"); ljoin = A.label("kg_join")
    for s in range(8):
        A(f"ds_read_b128 {vr(60+4*s,4)}, v8 offset:{48*TROW + 64*s}")
    poll1_addr(A)
    A.tick(99)
    stamp(A, "k0")
    A(f"s_mul_i32 s66, s{S_CH}, {KD_STRIDE}")
    A(f"s_add_u32 s66, s66, {L_KD+32}")
    A("v_and_b32 v9, 15, v0")
    A("v_mul_u32_u24 v9, 40, v9")
    A("v_add_u32 v9, s66, v9")
    A("v_bfe_u32 v10, v0, 4, 2")
    A(f"s_bitcmp1_b32 s{S_WAVE}, 0")
    A(f"s_cbranch_scc1 {lodd}")
    for s in range(8):
        A(f"ds_read_b128 {vr(92+4*s,4)}, v8 offset:{0*TROW + 64*s}")
    for s in range(8):
        A(f"ds_read_b128 {vr(168+4*s,4)}, v8 offset:{32*TROW + 64*s}")
    A("v_lshrrev_b32 v11, 1, v10")
    A("v_lshlrev_b32 v11, 2, v11")
    A("v_lshl_add_u32 v11, v10, 3, v11")
    A("v_add_u32 v11, v9, v11")
    A("v_mul_u32_u24 v12, 1280, v10")
    A("v_add_u32 v12, v9, v12")
    A("s_waitcnt lgkmcnt(8)")
    for s in range(8):
        A(f"v_mfma_f32_16x16x32_bf16 v[16:19], {vr(92+4*s,4)}, {vr(60+4*s,4)}, {'0' if s==0 else 'v[16:19]'}")
    A("s_waitcnt lgkmcnt(0)")
    for s in range(8):
        A(f"v_mfma_f32_16x16x32_bf16 v[20:23], {vr(168+4*s,4)}, {vr(60+4*s,4)}, {'0' if s==0 else 'v[20:23]'}")
    A("v_cvt_pk_bf16_f32 v16, v16, v17")
    A("v_cvt_pk_bf16_f32 v17, v18, v19")
    A("ds_write2_b32 v11, v16, v17 offset0:0 offset1:1")
    A("s_nop 4")
    A("v_cvt_pk_bf16_f32 v20, v20, v21")
    A("v_cvt_pk_bf16_f32 v21, v22, v23")
    A("ds_write_b16 v12, v20 offset:2560")
    A("ds_write_b16_d16_hi v12, v20 offset:2580")
    A("ds_write_b16 v12, v21 offset:3200")
    A("ds_write_b16_d16_hi v12, v21 offset:3220")
    A(f"s_branch {ljoin}")
    A(f"{lodd}:")
    for s in range(8):
        A(f"ds_read_b128 {vr(92+4*s,4)}, v8 offset:{16*TROW + 64*s}")
    A("v_mov_b32 v11, 640")
    A("v_mov_b32 v12, 660")
    A("v_cmp_eq_u32 vcc, 1, v10")
    A("v_mul_u32_u24 v13, 640, v10")
    A("s_nop 0")
    A("v_cndmask_b32 v11, v11, v12, vcc")
    A("v_cmp_lt_u32 vcc, 1, v10")
    A("v_mov_b32 v14, 4\nv_mov_b32 v15, 8\nv_mov_b32 v16, 20")
    A("v_cndmask_b32 v11, v11, v13, vcc")
    A("v_cndmask_b32 v14, v14, v15, vcc")
    A("v_cndmask_b32 v15, v15, v16, vcc")
    A("v_add_u32 v11, v9, v11")
    A("v_add_u32 v12, v11, v14")
    A("v_add_u32 v13, v11, v15")
    A("v_add_u32 v14, v13, v14")
    A("s_waitcnt lgkmcnt(0)")
    for s in range(8):
        A(f"v_mfma_f32_16x16x32_bf16 v[16:19], {vr(92+4*s,4)}, {vr(60+4*s,4)}, {'0' if s==0 else 'v[16:19]'}")
    A("s_nop 7")
    A("v_cvt_pk_bf16_f32 v16, v16, v17")
    A("v_cvt_pk_bf16_f32 v17, v18, v19")
    A("ds_write_b16 v11, v16")
    A("ds_write_b16_d16_hi v12, v16")
    A("ds_write_b16 v13, v17")
    A("ds_write_b16_d16_hi v14, v17")
    A(f"{ljoin}:")
    stamp(A, "k1")
    poll1_loads(A)
    stamp(A, "k2")
    if PREPOS == "po": preread(A)
    if POIPOS == "po": poison(A)
    stamp(A, "k3")
    A("s_waitcnt lgkmcnt(0)")
    A("s_barrier")
    stamp(A, "k4")
    for ch in range(2):
        R = 60 + 16 * ch
        for i in range(15):
            A(f"ds_read_u16 v{R + i}, v{40+i} offset:{ch*KD_STRIDE}")
        if ch == 0:
            A("v_lshlrev_b32 v5, 4, v0")
            A(f"v_add_u32 v4, {8*CS}, v5")
            A("v_mov_b32 v8, 0\nv_mov_b32 v9, 0\nv_mov_b32 v10, 0\nv_mov_b32 v11, 0")
            A("v_lshrrev_b32 v6, 4, v0")
            A(f"v_mul_u32_u24 v6, {CS}, v6")
            A("v_and_b32 v7, 15, v0")
            A("v_lshl_add_u32 v6, v7, 4, v6")
            A("s_waitcnt lgkmcnt(0)")
    for ch in range(2):
        R = 60 + 16 * ch
        if ch == 0: stamp(A, "k5")
        if ch == 1: A("s_waitcnt lgkmcnt(8)")
        for s in range(4):
            D = 92 + 6 * s if ch == 0 else 168 + 6 * s
            for k in range(6):
                A(f"v_lshl_or_b32 v{D+k}, v{R+s+2*k+1}, 16, v{R+s+2*k}")
            A(f"ds_write_b128 v{5-ch}, {vr(D,4)} offset:{L_CPY + s*CS}")
            A(f"ds_write_b128 v{5-ch}, {vr(D+2,4)} offset:{L_CPY + (s+4)*CS}")
            A.tick()
    A(f"ds_write_b128 v6, v[8:11] offset:{L_CPY + 4096}")
    A(f"ds_write_b128 v6, v[8:11] offset:{L_CPY + 4096 + 32}")
    stamp(A, "k6")
    A("s_barrier")
    stamp(A, "k7")
    A("v_cmp_gt_u32 vcc, 32, v0")
    A("s_and_saveexec_b64 s[66:67], vcc")
    A(f"ds_write_b128 v{V_T16}, v[8:11] offset:{L_U-L_KD}")
    A(f"ds_write_b128 v{V_T16}, v[8:11] offset:{L_U+4608-L_KD}")
    A("s_mov_b64 exec, s[66:67]")
    u_step(A, 2); u_step(A, 3)
    stamp(A, 4)

def phase6_u(A):
    lchk = A.label("p1chk"); lre = A.label("p1retry")
    A(f"s_branch {lchk}")
    st = A.snap()
    A(f"{lre}:")
    A("s_sleep 2")
    poll1_loads(A)
    A("s_waitcnt vmcnt(0)")
    A.restore(st)
    A(f"{lchk}:")
    A(f"v_mov_b32 v1, s{S_TAG}")
    A("v_lshlrev_b32 v9, 2, v0")
    A(f"v_add_u32 v9, {L_U}, v9")
    A("v_mov_b32 v10, 0x05040100\nv_mov_b32 v11, 0x07060302")
    A.need("poll")
    tags = [131 + 4 * i for i in range(4)] + [145 + 2 * r for r in range(8)]
    for k in range(6):
        A(f"v_bitop3_b32 v{2+k}, v{tags[2*k]}, v{tags[2*k+1]}, v1 bitop3:0x7e")
    A("v_or3_b32 v2, v2, v3, v4")
    A("v_or3_b32 v5, v5, v6, v7")
    A("v_or_b32 v2, v2, v5")
    A("v_cmp_ne_u32 vcc, 0, v2")
    spin_guard(A, lre)
    stamp(A, 5)
    for i in range(4):
        for h in range(2):
            A.tick(2)
            r = 2 * i + h
            g = 144 + 2 * r; x = 128 + 4 * i + h
            A(f"v_and_b32 v{g+1}, 0xffff0000, v{g}")
            A(f"v_lshlrev_b32 v{g}, 16, v{g}")
            A(f"v_rcp_f32 v{g+1}, v{g+1}")
            A(f"v_lshlrev_b32 v{88+2*r}, 16, v{x}")
            A(f"v_and_b32 v{89+2*r}, 0xffff0000, v{x}")
            A(f"v_pk_add_f32 {vr(88+2*r,2)}, {vr(88+2*r,2)}, {vr(g,2)} op_sel_hi:[1,0] neg_lo:[0,1] neg_hi:[0,1]")
            A(f"v_cvt_pk_bf16_f32 v{89+2*r}, v{88+2*r}, v{89+2*r}")
            A(f"v_lshlrev_b32 v{88+2*r}, 16, v{89+2*r}")
            A(f"v_and_b32 v{89+2*r}, 0xffff0000, v{89+2*r}")
            A(f"v_pk_mul_f32 {vr(88+2*r,2)}, {vr(88+2*r,2)}, {vr(g,2)} op_sel:[0,1] op_sel_hi:[1,1]")
        A(f"v_cvt_pk_bf16_f32 v{104+i}, v{88+4*i}, v{90+4*i}")
        A(f"v_cvt_pk_bf16_f32 v{108+i}, v{89+4*i}, v{91+4*i}")
        A(f"ds_write2st64_b32 v9, v{104+i}, v{108+i} offset0:{2+4*i} offset1:{2+4*i+18}")
    for i in range(4):
        A(f"v_perm_b32 v{80+i}, v{129+4*i}, v{128+4*i}, v10")
        A(f"v_perm_b32 v{84+i}, v{129+4*i}, v{128+4*i}, v11")
        A(f"ds_write2st64_b32 v9, v{80+i}, v{84+i} offset0:{36+4*i} offset1:{36+4*i+16}")

W1A = lambda mt, ks: mt * 128 + 4 * ks
QSETS = [(0, 3, 4, 7), (1, 2, 5, 6)]

def conv_addr(A):
    A("v_and_b32 v1, 15, v0")
    A("v_bfe_u32 v2, v0, 4, 2")
    A("v_and_b32 v3, 7, v1")
    A("v_sub_u32 v3, 7, v3")
    A(f"v_mul_u32_u24 v206, {CS}, v3")
    A("v_and_b32 v3, 8, v1")
    A("v_lshlrev_b32 v3, 1, v3")
    A("v_sub_u32 v3, v2, v3")
    A("v_add_u32 v3, 16, v3")
    A("v_lshl_add_u32 v206, v3, 4, v206")
    A(f"s_mul_i32 s65, s{S_CH}, {8*CS}")
    A("v_add_u32 v206, s65, v206")
    A("v_add_u32 v207, v1, v2")
    A(f"s_mul_i32 s65, s{S_CH}, 4608")
    A(f"s_add_u32 s65, s65, {L_U + 272}")
    A("v_lshl_add_u32 v207, v207, 4, s65")
    A("v_lshrrev_b32 v3, 1, v2")
    A("v_lshlrev_b32 v3, 8, v3")
    A("v_lshl_add_u32 v3, v1, 4, v3")
    A("v_and_b32 v211, 1, v2")
    A("v_lshl_add_u32 v208, v211, 3, v3")
    A(f"s_add_u32 s65, s65, {512-272}")
    A("v_add_u32 v209, s65, v208")
    A(f"s_lshl_b32 s65, s{S_CH}, 12")
    A(f"s_add_u32 s65, s65, {L_XT}")
    A("v_add_u32 v208, s65, v208")

def phase7_conv(A):
    stamp(A, "k8")
    A("s_waitcnt lgkmcnt(0)")
    A("s_barrier")
    stamp(A, 6)
    lne = A.label("noepoch")
    A(f"s_cmp_lg_u32 s{S_GW}, 0")
    A(f"s_cbranch_scc1 {lne}")
    A(f"v_mov_b32 v1, {WS_EPOCH}")
    A(f"v_mov_b32 v2, s{S_TAG}")
    stq = A.snap()
    one_lane_store(A, 1, 2)
    A.restore(stq)
    A(f"{lne}:")
    assert not A.bg
    lq1 = A.label("cv_q1"); lj = A.label("cv_j")
    A(f"s_bitcmp1_b32 s{S_WAVE}, 0")
    A(f"s_cbranch_scc1 {lq1}")
    st0 = A.snap()
    for qi, qs in enumerate(QSETS):
        if qi == 1: A(f"{lq1}:")
        A.restore(st0)
        qmax = max(qs)
        ACC = 12
        FA = lambda buf, a: 60 + buf * 64 + 4 * a
        FB = lambda buf, g: 60 + buf * 64 + 32 + 4 * g
        def reads(rho, buf):
            out = []
            for i in range(qmax + 1):
                out.append((f"ds_read_b128 {vr(FA(buf,i),4)}, v206 offset:{64*(63-(8*i+rho))}", f"A{rho}_{i}"))
                out.append((f"ds_read_b128 {vr(FB(buf,i),4)}, v207 offset:{64*(8*i-rho+7)}", f"B{rho}_{i}"))
            return out
        for l in reads(0, 0): A(l)
        nd = lambda *t: (lambda: A.need(*t))
        wl = ["s_nop 0"] * 4 + [nd("U4")] + w_tr(4, 0) + [nd("U5")] + w_tr(5, 1)[:4] + [nd("tU4")] + U(6) + w_tr(5, 1)[4:] + ["s_nop 0"] * 3 + [nd("tU5")] + U(7) + ["s_nop 0"] * 2 + [nd("U6")] + w_tr(6, 0)
        side = []
        for k, q in enumerate(qs):
            side.append((f"ds_read_b64 {vr(28+2*k,2)}, v208 offset:{512*q}", "xu"))
            side.append((f"ds_read_b64 {vr(36+2*k,2)}, v209 offset:{512*q}", "xu"))
        prep = []
        for k in range(4):
            for h in range(2):
                u = 36 + 2 * k + h; x = 28 + 2 * k + h
                r0 = 44 + 4 * k + 2 * h; x0 = 188 + 4 * k + 2 * h
                prep += [f"v_lshlrev_b32 v{r0}, 16, v{u}", f"v_and_b32 v{r0+1}, 0xffff0000, v{u}",
                         f"v_mul_f32 v{r0}, s{S_DS}, v{r0}", f"v_mul_f32 v{r0+1}, s{S_DS}, v{r0+1}",
                         f"v_cvt_pk_bf16_f32 v{r0+1}, v{r0}, v{r0+1}", f"v_lshlrev_b32 v{r0}, 16, v{r0+1}",
                         f"v_and_b32 v{r0+1}, 0xffff0000, v{r0+1}", f"v_lshlrev_b32 v{x0}, 16, v{x}",
                         f"v_and_b32 v{x0+1}, 0xffff0000, v{x}"]
        def epi(k):
            out = []
            for stp in range(9):
                for h in range(2):
                    y0 = ACC + 4 * k + 2 * h; r0 = 44 + 4 * k + 2 * h; x0 = 188 + 4 * k + 2 * h
                    out.append([f"v_cvt_pk_bf16_f32 v{y0+1}, v{y0}, v{y0+1}", f"v_lshlrev_b32 v{y0}, 16, v{y0+1}",
                        f"v_and_b32 v{y0+1}, 0xffff0000, v{y0+1}", f"v_pk_add_f32 {vr(y0,2)}, {vr(y0,2)}, {vr(r0,2)}",
                        f"v_cvt_pk_bf16_f32 v{y0+1}, v{y0}, v{y0+1}", f"v_lshlrev_b32 v{y0}, 16, v{y0+1}",
                        f"v_and_b32 v{y0+1}, 0xffff0000, v{y0+1}", f"v_pk_add_f32 {vr(y0,2)}, {vr(y0,2)}, {vr(x0,2)}",
                        f"v_cvt_pk_bf16_f32 v{4+2*k+h}, v{y0}, v{y0+1}"][stp])
            if k & 1:
                p = k >> 1; q1 = qs[2 * p]; b = 4 + 4 * p
                out += ["s_nop 1", f"v_permlane16_swap_b32 v{b}, v{b+2}", f"v_permlane16_swap_b32 v{b+1}, v{b+3}",
                        (f"global_store_dwordx4 v228, {vr(b,4)}, {WSP} offset:{2048*p} sc1", "hst")]
            return out
        first = set()
        for rho in range(8):
            buf = rho & 1
            nxt = reads(rho + 1, buf ^ 1) if rho < 7 else []
            if rho == 0: nxt = nxt + side
            if rho in (1, 3, 5, 7): stamp(A, f"r{rho}")
            if rho == 2: A.need("xu")
            if rho == 7: A.need("poi")
            pairs = [(a, g) for a in range(qmax + 1) for g in range(qmax + 1) if (a + g) in qs]
            if rho == 7: pairs.sort(key=lambda p: (p[0] + p[1], max(p)))
            else: pairs.sort(key=lambda p: (max(p), p[0]))
            epq = []; since = {}
            for idx, (a, g) in enumerate(pairs):
                k = qs.index(a + g)
                c = vr(ACC + 4 * k, 4)
                src = c if k in first else "0"
                first.add(k)
                A.need(f"A{rho}_{a}", f"B{rho}_{g}")
                A(f"v_mfma_f32_16x16x32_bf16 {c}, {vr(FA(buf,a),4)}, {vr(FB(buf,g),4)}, {src}")
                if nxt: A(nxt.pop(0))
                if rho == 0 and nxt and idx % 3 == 0: A(nxt.pop(0))
                if 1 <= rho < 7 and wl and idx % 3 != 2:
                    while callable(wl[0]): wl.pop(0)()
                    it = wl.pop(0)
                    if it != "s_nop 0": A(it)
                if 2 <= rho < 7 and prep and (idx >= 2 or rho > 2): A(prep.pop(0))
                if rho == 7:
                    nxtk = qs.index(sum(pairs[idx + 1])) if idx + 1 < len(pairs) else None
                    if nxtk != k: since[k] = len(A.L)
                    for kk in list(since):
                        if len(A.L) - since[kk] >= 8:
                            epq += epi(kk); del since[kk]
                    for _ in range(2):
                        if epq: A(epq.pop(0))
                        elif since: A("s_nop 0")
            for l in nxt: A(l)
            assert rho < 6 or not prep
        for l in wl: A(l)
        for l in epq: A(l)
        for kk in sorted(since):
            gap = 8 - (len(A.L) - since[kk])
            if gap > 0: A(f"s_nop {gap-1}")
            for l in epi(kk): A(l)
        if qi == 0: A(f"s_branch {lj}")
    A(f"{lj}:")
    stamp(A, 7)

G1ACC = lambda mt, tt: 64 + 32 * mt + 16 * tt
G1FB = lambda buf, tt: 40 + 8 * buf + 4 * tt
V_ONES = 12
V_CSA = 16
V_MB = 24
V_MEAN = 32
CSACC = 96
V_HV = 36

V_SEL = 8
def cs_mfma(A, units, mts):
    for u in units:
        for k in range(4):
            ks = 4 * u + k
            for mt in mts:
                c = vr(CSACC + 4 * mt, 4)
                A(f"v_mfma_f32_16x16x32_bf16 {c}, {vr(V_SEL,4)}, {ar(W1A(mt,ks),4)}, {'0' if ks==0 else c}")

def cs_split(A, mt):
    c = CSACC + 4 * mt; d = V_CSA + 4 * mt
    A(f"v_and_b32 v{c+1}, 0xffff0000, v{c}")
    A(f"v_sub_f32 v{c+2}, v{c}, v{c+1}")
    A(f"v_and_b32 v{c+3}, 0xffff0000, v{c+2}")
    A(f"v_sub_f32 v{c+2}, v{c+2}, v{c+3}")
    A(f"v_lshrrev_b32 v{c+1}, 16, v{c+1}")
    A(f"v_or_b32 v{d}, v{c+1}, v{c+3}")
    A(f"v_lshrrev_b32 v{d+1}, 16, v{c+2}")
    A(f"v_mov_b32 v{d+2}, 0\nv_mov_b32 v{d+3}, 0")

def w2_setup(A):
    A(f"s_mov_b32 s{SRD_W}, s{S_W2}")
    A(f"s_mov_b32 s{SRD_W+1}, s{S_W2+1}")
    A(f"s_mul_i32 s{S_WCOL}, s{S_WAVE}, {448*1024}")
    A(f"s_lshl_b32 s64, s{S_J}, 7")
    A(f"s_add_u32 s{S_WCOL}, s{S_WCOL}, s64")
    A(f"v_lshl_add_u32 v{V_WV}, v{V_ROW}, 10, v{V_COL}")
    for i in range(1, 4):
        A(f"v_add_u32 v{V_WV+i}, {i*(8*1024-1024)}, v{V_WV}")
    A(f"s_lshl_b32 s64, s{S_CH}, 6")
    st_addr(A, 64)

def g1_rd(ks, tag):
    buf = tag % 3
    out = []
    for tt, va in ((0, V_TR0), (1, V_TR1)):
        for h in range(2):
            out.append((f"ds_read_b64_tr_b16 {vr(G1FB(buf,tt)+2*h,2)}, v{va} offset:{L_HT + (16*ks+8*h)*128}", f"h{tag}_{tt}"))
    return out

def mean_read(A):
    A("v_and_b32 v34, 31, v0")
    A("v_lshlrev_b32 v34, 2, v34")
    A(f"v_add_u32 v34, {L_ST2}, v34")
    A(f"ds_read2_b32 v[{V_MEAN}:{V_MEAN+1}], v34 offset0:0 offset1:32", "mean")

def mean_frag():
    out = []
    for tt in range(2):
        d = V_MB + 4 * tt
        out += [f"v_cvt_pk_bf16_f32 v{d}, -v{V_MEAN+tt}, -v{V_MEAN+tt}",
                f"v_cndmask_b32 v{d}, 0, v{d}, s[70:71]",
                f"v_and_b32 v{d+1}, 0xffff, v{d}",
                f"v_mov_b32 v{d+2}, 0", f"v_mov_b32 v{d+3}, 0"]
    return out

def w1_tail(A, mts, between=None):
    A(f"s_lshl_b32 s64, s{S_RB}, 6")
    A(f"s_add_u32 s64, s64, {WS_XCC}")
    A("v_and_b32 v5, 7, v0")
    A("v_lshl_add_u32 v5, v5, 3, s64")
    A(f"global_load_dwordx2 v[6:7], v5, {WSP} sc1", "xcc")
    A.need("U7")
    stamp(A, "t0")
    for l in w_tr(7, 1, mts): A(l)
    w2_setup(A)
    A.need("tU6")
    for l in w_unit(0, 0, 1024, 7): A(l)
    if between: between()
    A.need("tU7")
    stamp(A, "t1")
    cs_mfma(A, range(8), mts)
    stamp(A, "t2")
    A.need("xcc")
    stamp(A, 8)
    one_lane_store(A, 2, 3, 0)
    A(f"v_xor_b32 v6, s{S_XCC}, v6")
    A("v_xor_b32 v7, v7, v3")
    A("v_or_b32 v6, v6, v7")
    A("v_cmp_ne_u32 vcc, 0, v6")
    A("s_cmp_eq_u64 vcc, 0")
    A(f"s_cselect_b32 s{S_LOC}, {0 if 'nolocal' in OPT else 1}, 0")
    for mt in mts: cs_split(A, mt)
    A.need("V0")
    stamp(A, "t3")
    for l in w_tr(0, 0, (0, 1), True): A(l)

def spread(A, though, n_left):
    k = (len(though) + n_left - 1) // n_left
    for _ in range(k):
        it = though.pop(0)
        if callable(it): it()
        else: A(it)

def nan_check(A, target):
    A(f"v_cmp_u_f32 vcc, v{V_MEAN}, v{V_MEAN+1}")
    A(f"s_and_b64 vcc, vcc, s[{S_CHK}:{S_CHK+1}]")
    A(f"s_cbranch_scc1 {target}")

def phase8_g1(A):
    lw3 = A.label("w3"); lj = A.label("g1j")
    lg0 = A.label("g1s"); lr0 = A.label("g1r"); lr3 = A.label("g1r3")
    A(f"s_lshl_b32 s64, s2, {FSH}")
    A(f"s_lshl_b32 s65, s{S_WAVE}, 2")
    A("s_add_u32 s64, s64, s65")
    A(f"s_add_u32 s64, s64, {WS_FH}")
    A("v_mov_b32 v2, s64")
    A(f"v_mov_b32 v3, s{S_TAG}")
    if "nohint" not in OPT:
        one_lane_store(A, 2, 3)
        A(f"v_add_u32 v2, {WS_FH2-WS_FH}, v2")
    for r in range(4): A(f"v_mov_b32 v{V_ONES+r}, 0x3f803f80")
    A("s_mov_b32 s70, -1\ns_mov_b32 s71, 0")
    A(f"s_mov_b64 s[{S_CHK}:{S_CHK+1}], -1")
    A("s_mov_b32 s64, 0x00100001\ns_mov_b32 s65, 0x00100001")
    for r in range(4): A(f"v_cndmask_b32 v{V_SEL+r}, 0, v{V_ONES}, s[64:65]")
    A(f"s_cmp_eq_u32 s{S_WAVE}, 3")
    A(f"s_cbranch_scc1 {lw3}")
    st0 = A.snap()
    V = lambda u, slot: w_unit(u, slot, 1024, 7)
    TV = lambda u, slot: w_tr(u, slot, (0, 1), True)
    nd = lambda *t: (lambda: A.need(*t))
    w1_tail(A, (0, 1))
    stamp(A, 9)
    A(f"{lg0}:")
    A("s_barrier")
    stamp(A, 10)
    for l in g1_rd(0, 0) + g1_rd(1, 1): A(l)
    ev = {k: [] for k in range(32)}
    dm = []
    for u, slot, pre in ((1, 1, None), (2, 2, None), (3, 0, None), (4, 1, "tV1")):
        for i, x in enumerate(V(u, slot)): dm.append(([nd(pre)] if (pre and i == 0) else []) + [x])
    for n, x in enumerate(dm): ev[4 + (4 * n) // 5] += x
    for u, slot, k0, k1 in ((1, 1, 15, 16), (2, 2, 21, 23), (3, 0, 27, 28)):
        t = TV(u, slot)
        ev[k0] = [nd(f"V{u}")] + t[:8] + ev[k0]; ev[k1] = t[8:] + ev[k1]
    for ks in range(32):
        if ks in (4, 12, 20, 28): stamp(A, f"g{ks}")
        if ks in (2, 10, 18, 24): A("s_barrier")
        side = []
        if ks + 2 < 32: side += g1_rd(ks + 2, ks + 2)
        if ks == 18: mean_read(A)
        if ks == 20:
            A.need("mean")
            nan_check(A, lr0)
            side += mean_frag()
        if "nov" not in OPT: side += ev[ks]
        n = 0
        for mt in range(2):
            for tt in range(2):
                c = vr(G1ACC(mt, tt), 16)
                A.need(f"h{ks}_{tt}")
                A(f"v_mfma_f32_32x32x16_bf16 {c}, {ar(W1A(mt,ks),4)}, {vr(G1FB(ks%3,tt),4)}, {'0' if ks==0 else c}")
                spread(A, side, 4 - n); n += 1
        if ks == 22:
            for mt in range(2):
                for tt in range(2):
                    c = vr(G1ACC(mt, tt), 16)
                    A(f"v_mfma_f32_32x32x16_bf16 {c}, {vr(V_CSA+4*mt,4)}, {vr(V_MB+4*tt,4)}, {c}")
    stamp(A, "g32")
    A("s_waitcnt lgkmcnt(0)")
    A(f"s_branch {lj}")
    A(f"{lr0}:")
    A(f"s_mov_b64 s[{S_CHK}:{S_CHK+1}], 0")
    A("s_waitcnt vmcnt(0) lgkmcnt(0)")
    A("s_barrier")
    A(f"s_branch {lg0}")
    A(f"{lr3}:")
    A(f"s_mov_b64 s[{S_CHK}:{S_CHK+1}], 0")
    for i in range(4): A(f"v_add_u32 v{224+i}, {WS_FH2-WS_FH}, v{224+i}")
    A("s_waitcnt vmcnt(0) lgkmcnt(0)")
    A("s_barrier")
    lre = A.label("p2retry"); lchk = A.label("p2chk")
    A(f"s_branch {lre}")
    A(f"{lw3}:")
    A.restore(st0)
    def polls():
        for i in range(4):
            A(f"global_load_dwordx4 {vr(64+4*i,4)}, v{224+i}, {WSP} sc1", "p2")
    A(f"v_lshlrev_b32 v224, {FSH-4}, v{V_L16}")
    for i in range(3, -1, -1): A(f"v_add_u32 v{224+i}, {WS_FH + (i << (FSH+6))}, v224")
    A(f"v_lshl_add_u32 v{V_HV}, v{V_ROW}, 12, v{V_COL}")
    for i in range(1, 4):
        A(f"v_add_u32 v{V_HV+i}, {i*(8*4096-1024)}, v{V_HV}")
    w1_tail(A, (0,), polls)
    A(f"s_branch {lchk}")
    st = A.snap()
    A(f"{lre}:")
    if int(os.environ.get("PSL", "0")): A("s_sleep " + os.environ["PSL"])
    polls()
    A("s_waitcnt vmcnt(0)")
    A.restore(st)
    A(f"{lchk}:")
    A(f"s_lshl_b32 s64, s{S_RB}, 7")
    A.need("p2")
    for k in range(8):
        A(f"v_bitop3_b32 v{80+k}, v{64+2*k}, v{65+2*k}, v3 bitop3:0x7e")
    A("v_or3_b32 v80, v80, v81, v82")
    A("v_or3_b32 v83, v83, v84, v85")
    A("v_or3_b32 v80, v80, v86, v87")
    A("v_or_b32 v80, v80, v83")
    A("v_cmp_ne_u32 vcc, 0, v80")
    spin_guard(A, lre)
    stamp(A, 9)
    def hgrp(gi):
        out = []
        for i in range(4):
            pre = f"s_mov_b32 m0, {L_HT + gi*4096}\ns_add_u32 s66, s64, {gi*0x20000}\n" if i == 0 else ""
            post = ""
            out.append((pre + f"buffer_load_dwordx4 v{V_HV+i}, s[{SRD_HT}:{SRD_HT+3}], s66 offen offset:{1024*i} sc1 lds" + post, f"H{2*gi + i//2}"))
        return out
    NPRE = 6
    for gi in range(NPRE):
        for l in hgrp(gi): A(l)
    A.need("H3")
    A("s_barrier")
    stamp(A, 10)
    RS = lambda tt: G1ACC(1, tt)
    ev = {k: [] for k in range(64)}
    for gi in range(NPRE, 16): ev[gi - NPRE] += hgrp(gi)
    for u, slot, pre, i0 in ((1, 1, None, 12), (2, 0, None, 24), (4, 1, "tV1", 36), (3, 2, None, 48)):
        for i, x in enumerate(V(u, slot)):
            ev[i0 + (i if u == 3 else (3 * i) // 2)] += ([nd(pre)] if (pre and i == 0) else []) + [x]
    for u, slot, i0 in ((1, 1, 30), (2, 0, 42), (3, 2, 60)):
        t = TV(u, slot)
        for q in range(4):
            ev[i0 + q] = ([nd(f"V{u}")] if q == 0 else []) + t[4*q:4*q+4] + ev[i0 + q]
    for l in g1_rd(0, 0) + g1_rd(1, 1): A(l)
    for it in range(64):
        ks = it % 32
        if it in (8, 24, 40, 56): stamp(A, f"g{it//2}")
        if it == 4:
            A.need("H11"); A("s_barrier")
        if it == 20:
            A.need("H31"); A("s_barrier")
        if it == 48: A("s_barrier")
        side = []
        if it + 2 < 64:
            if it + 2 < 32: side.append(nd(f"H{it+2}"))
            side += g1_rd((it + 2) % 32, it + 2)
        if it == 35:
            A(f"v_cndmask_b32 v35, v{RS(1)}, v{RS(0)}, s[70:71]")
            A(f"v_mul_f32 v35, {f32hex(1/512)}, v35")
            A("v_and_b32 v34, 63, v0")
            A("v_lshlrev_b32 v34, 2, v34")
            A(f"v_add_u32 v34, {L_ST2}, v34")
            A("ds_write_b32 v34, v35")
            A(f"v_mul_f32 v{V_MEAN}, {f32hex(1/512)}, v{RS(0)}")
            A(f"v_mul_f32 v{V_MEAN+1}, {f32hex(1/512)}, v{RS(1)}")
            A("s_waitcnt lgkmcnt(0)")
            A("s_barrier")
            nan_check(A, lr3)
            side += mean_frag()
        side = ev[it] + side if it < 12 else side + ([] if "nov" in OPT else ev[it])
        for tt in range(2):
            c = vr(RS(tt) if it < 32 else G1ACC(0, tt), 16)
            a = vr(V_ONES, 4) if it < 32 else ar(W1A(0, ks), 4)
            A.need(f"h{it}_{tt}")
            A(f"v_mfma_f32_32x32x16_bf16 {c}, {a}, {vr(G1FB(it%3,tt),4)}, {'0' if ks==0 else c}")
            spread(A, side, 2 - tt)
        if it == 38:
            for tt in range(2):
                c = vr(G1ACC(0, tt), 16)
                A(f"v_mfma_f32_32x32x16_bf16 {c}, {vr(V_CSA,4)}, {vr(V_MB+4*tt,4)}, {c}")
    stamp(A, "g32")
    A("s_waitcnt lgkmcnt(0)")
    A(f"{lj}:")
    A.q = {"lgkm": [], "vm": []}
    A(f"s_mul_i32 s64, s{S_RB}, 229376")
    A(f"s_add_u32 s64, s64, {WS_H1}")
    A(f"s_mul_i32 s65, s{S_J}, {14*2048}")
    A(f"s_lshl_b32 s66, s{S_MTB}, 12")
    A("s_add_u32 s65, s65, s66")
    A("s_add_u32 s65, s65, s64")
    A(f"v_add_u32 v4, s65, v{V_L16}")
    A("v_add_u32 v5, 4096, v4")
    A(f"s_mul_i32 s65, s{S_WAVE}, {28*2048}")
    A("s_add_u32 s64, s64, s65")
    A(f"s_add_u32 s{S_H1B}, s{S_WS}, s64")
    A(f"s_addc_u32 s{S_H1B+1}, s{S_WS+1}, 0")
    lskip = A.label("g1skip"); lglob = A.label("g1glob")
    A(f"s_cmp_eq_u32 s{S_LOC}, 0")
    A(f"s_cbranch_scc1 {lglob}")
    for sc in ("", "sc1"):
        if sc: A(f"{lglob}:")
        for mt in range(2):
            if mt == 1:
                A(f"s_cmp_eq_u32 s{S_WAVE}, 3")
                A(f"s_cbranch_scc1 {lskip}")
            for tt in range(2):
                acc = G1ACC(mt, tt)
                for hh in range(2):
                    P = acc + 8 * hh
                    for r in range(4):
                        A(f"v_cvt_pk_bf16_f32 v{P+r}, v{P+2*r}, v{P+2*r+1}")
                    for r in range(4):
                        A(f"v_pk_max_i16 v{P+r}, v{P+r}, 0")
                    A(f"global_store_dwordx4 v{4+mt}, {vr(P,4)}, {WSP} offset:{(hh*2+tt)*1024} {sc}")
        if not sc: A(f"s_branch {lskip}")
    A(f"{lskip}:")
    stamp(A, 11)

G2D = int(os.environ.get("G2D", "6"))
def phase9_g2(A):
    V = lambda u, slot: w_unit(u, slot, 1024, 7)
    TV = lambda u, slot: w_tr(u, slot, (0, 1), True)
    A(f"s_and_b32 s66, s{S_WAVE}, 1")
    A("s_lshl_b32 s64, s66, 6")
    A(f"v_xor_b32 v7, s64, v{V_TR0}")
    SQ = 40
    def sq_rd(ks):
        for h in range(2):
            A(f"ds_read_b64_tr_b16 {vr(SQ+4*(ks%6)+2*h,2)}, v7 offset:{L_HT + (16*ks+8*h)*128}", f"q{ks}")
    def sq_step(ks):
        A.need(f"q{ks}")
        for r in range(4):
            f = SQ + 4 * (ks % 6) + r
            acc = 12 + (r & 1)
            A(f"v_dot2_f32_bf16 v{acc}, v{f}, v{f}, {'0' if (ks==0 and r<2) else 'v%d'%acc}")
        if ks + 6 < 32: sq_rd(ks + 6)
    for ks in range(6): sq_rd(ks)
    A(f"s_lshl_b32 s64, s{S_RB}, 7")
    A(f"s_add_u32 s64, s64, {WS_FH1}")
    A(f"s_lshl_b32 s65, s{S_J}, 4")
    A(f"s_lshl_b32 s67, s{S_WAVE}, 2")
    A("s_add_u32 s65, s65, s67")
    A("s_add_u32 s65, s65, s64")
    A("v_mov_b32 v2, s65")
    A(f"s_lshl_b32 s67, s{S_WAVE}, 5")
    A("s_add_u32 s64, s64, s67")
    A("v_and_b32 v6, 7, v0")
    A("v_lshl_add_u32 v6, v6, 2, s64")
    A("s_lshl_b32 s64, s66, 10")
    A(f"v_add_u32 v10, s64, v{V_L16}")
    A("v_xor_b32 v11, 0x400, v10")
    A("s_cmp_eq_u32 s66, 1")
    A(f"s_cselect_b64 s[68:69], -1, 0")
    A(f"v_cndmask_b32 v8, v{V_MEAN}, v{V_MEAN+1}, s[68:69]")
    NQ1 = int(os.environ.get("NQ1", "14"))
    for ks in range(NQ1): sq_step(ks)
    A("s_waitcnt vmcnt(0)")
    lfg = A.label("fglob"); lfj = A.label("fjoin")
    A("s_mov_b64 exec, 1")
    A(f"s_cmp_eq_u32 s{S_LOC}, 0")
    A(f"s_cbranch_scc1 {lfg}")
    A(f"global_store_dword v2, v3, {WSP}")
    A(f"s_branch {lfj}")
    A(f"{lfg}:")
    A(f"global_store_dword v2, v3, {WSP} sc1")
    A(f"{lfj}:")
    A("s_mov_b64 exec, -1")
    A.q["vm"] = [None]
    stamp(A, "c0")
    A.bg = V(5, 2) + V(6, 0)
    for ks in range(NQ1, 32):
        sq_step(ks); A.tick()
    A.tick(99)
    A(f"global_load_dword v9, v6, {WSP} sc1")
    A(f"s_lshl_b32 s64, s{S_J}, 13")
    A(f"s_lshl_b32 s65, s{S_CH}, 12")
    A("s_add_u32 s64, s64, s65")
    A("v_add_u32 v7, s64, v7")
    for q in range(4):
        A(f"ds_read_b64_tr_b16 {vr(16+2*q,2)}, v7 offset:{q*1024}", "res")
    for l in TV(4, 1): A(l)
    A("v_add_f32 v12, v12, v13")
    A("s_nop 0")
    A("v_mov_b32 v13, v12")
    A("s_nop 1")
    A("v_permlane32_swap_b32 v12, v13")
    A("v_add_f32 v12, v12, v13")
    A(f"v_mul_f32 v12, {f32hex(1/512)}, v12")
    ln_finish(A, 8, 12, 13, 14)
    A("v_and_b32 v8, 0xffff0000, v8")
    A("v_rcp_f32 v8, v8")
    if os.environ.get("PSCALE"):
        A("s_nop 0")
        A(f"v_mul_f32 v8, {f32hex(float(os.environ['PSCALE']))}, v8")
    stamp(A, "c1")
    lre = A.label("p3retry"); lchk = A.label("p3chk")
    A(f"s_branch {lchk}")
    A(f"{lre}:")
    A(f"global_load_dword v9, v6, {WSP} sc1")
    A(f"{lchk}:")
    A("s_waitcnt vmcnt(0)")
    A("v_cmp_ne_u32 vcc, v9, v3")
    spin_guard(A, lre)
    stamp(A, 12)
    FB = lambda s, tt: (64 + 8 * (s % 16) if s % 16 < 8 else 192 + 8 * (s % 16 - 8)) + 4 * tt
    ACC = lambda dt, tt: 64 + 32 * dt + 16 * tt
    def ld(s):
        out = []
        pre = ""
        if s % 4 == 0:
            pre = f"s_add_u32 s68, s{S_H1B}, {(s//4)*8192+4096}\ns_addc_u32 s69, s{S_H1B+1}, 0\n"
        for tt in range(2):
            out.append(((pre if tt == 0 else "") + f"global_load_dwordx4 {ar(FB(s,tt),4)}, v{10+tt}, s[68:69] offset:{(s%4)*2048-4096} {HSC}", f"f{s}_{tt}"))
        return out
    for s in range(G2D):
        for l in ld(s): A(l)
    for l in TV(5, 2) + TV(6, 0): A(l)
    misc = []
    for sg in range(1, 4):
        misc.append(f"s_xor_b32 s70, s{S_WAVE}, {sg}\ns_lshl_b32 s70, s70, 14\ns_add_u32 s70, s70, {L_S0 + (sg-1)*4096}\nv_add_u32 v{24+sg}, s70, v{V_L16}")
    misc.append(f"v_add_u32 v24, s{S_SL0}, v{V_L16}\ns_lshl_b32 s70, s{S_RB}, 16\ns_lshl_b32 s71, s66, 15\ns_add_u32 s70, s70, s71")
    misc.append(f"s_lshl_b32 s71, s{S_J}, 7\ns_add_u32 s70, s70, s71\ns_lshl_b32 s71, s{S_CH}, 6\ns_add_u32 s70, s70, s71")
    misc.append("v_bfe_u32 v28, v0, 2, 4\nv_and_b32 v29, 3, v0\nv_mul_u32_u24 v31, 80, v28\nv_lshl_add_u32 v31, v29, 4, v31")
    misc.append(f"v_lshl_add_u32 v28, v28, 10, s70\nv_lshl_add_u32 v28, v29, 4, v28\nv_add_u32 v29, 16384, v28\ns_add_u32 s70, s{S_SL0}, 12288")
    misc.append("v_add_u32 v31, s70, v31\nv_and_b32 v30, 31, v0\nv_mul_u32_u24 v30, 80, v30\nv_bfe_u32 v15, v0, 5, 1")
    misc.append("v_lshl_add_u32 v30, v15, 3, v30\nv_add_u32 v30, s70, v30\nv_mov_b32 v9, v8")
    for k in range(0, 8, 2):
        misc.append(f"v_lshlrev_b32 v{40+2*k}, 16, v{16+k}\nv_and_b32 v{41+2*k}, 0xffff0000, v{16+k}\nv_lshlrev_b32 v{42+2*k}, 16, v{17+k}\nv_and_b32 v{43+2*k}, 0xffff0000, v{17+k}")
    stamp(A, "d0")
    for s in range(28):
        if s in (0, 9, 18): stamp(A, f"e{s}")
        if s == 2: A("s_waitcnt lgkmcnt(0)")
        side = ld(s + G2D) if s + G2D < 28 else []
        if s >= 2 and misc: side.append(misc.pop(0))
        order = [(0, 0), (1, 0), (0, 1), (1, 1)] if s < 27 else [(0, 1), (1, 0), (1, 1), (0, 0)]
        for n, (dt, tt) in enumerate(order):
            c = vr(ACC(dt, tt), 16)
            A.need(f"f{s}_{tt}")
            A(f"v_mfma_f32_32x32x16_bf16 {c}, {w2reg(dt,s)}, {ar(FB(s,tt),4)}, {'0' if s==0 else c}")
            if side: A(side.pop(0))
    assert not misc
    stamp(A, "d1")
    A("s_nop 9")
    for sg in range(1, 4):
        for q in range(4):
            A(f"ds_write_b128 v24, {vr(ACC(sg>>1, sg&1)+4*q,4)} offset:{(sg-1)*4096+q*1024}")
    A("s_waitcnt lgkmcnt(0)")
    stamp(A, "d2")
    A("s_barrier")
    stamp(A, "d3")
    R = 128
    for q in range(4):
        for p in range(3):
            A(f"ds_read_b128 {vr(R+16*p+4*q,4)}, v{25+p} offset:{q*1024}", f"r{q}")
    for q in range(4):
        A.need(f"r{q}")
        seqs = []
        for h in range(2):
            y = 64 + 4 * q + 2 * h; o = 4 * q + 2 * h
            seqs.append([f"v_pk_add_f32 {vr(R+o,2)}, {vr(R+o,2)}, {vr(R+16+o,2)}",
                f"v_pk_add_f32 {vr(y,2)}, {vr(y,2)}, {vr(R+32+o,2)}",
                f"v_pk_add_f32 {vr(y,2)}, {vr(y,2)}, {vr(R+o,2)}",
                f"v_pk_mul_f32 {vr(y,2)}, {vr(y,2)}, v[8:9]",
                f"v_cvt_pk_bf16_f32 v{y+1}, v{y}, v{y+1}",
                f"v_lshlrev_b32 v{y}, 16, v{y+1}",
                f"v_and_b32 v{y+1}, 0xffff0000, v{y+1}",
                f"v_pk_add_f32 {vr(y,2)}, {vr(y,2)}, {vr(40+o,2)}",
                f"v_cvt_pk_bf16_f32 v{16+2*q+h}, v{y}, v{y+1}"])
        for x, y in zip(*seqs): A(x); A(y)
        A(f"ds_write_b64 v30, {vr(16+2*q,2)} offset:{16*q}")
    A("s_waitcnt lgkmcnt(0)")
    A("ds_read_b128 v[96:99], v31")
    A("ds_read_b128 v[100:103], v31 offset:1280")
    OSC = os.environ.get("OSC", "")
    A("s_waitcnt lgkmcnt(1)")
    A(f"global_store_dwordx4 v28, v[96:99], s[{S_OUT}:{S_OUT+1}] {OSC}")
    A("s_waitcnt lgkmcnt(0)")
    A(f"global_store_dwordx4 v29, v[100:103], s[{S_OUT}:{S_OUT+1}] {OSC}")
    stamp(A, "d4")

import subprocess, tempfile
def align_pass(lines):
    src = '.amdgcn_target "amdgcn-amd-amdhsa--gfx950"\n.text\n' + "\n".join(lines) + "\n"
    with tempfile.TemporaryDirectory() as d:
        open(d + "/a.s", "w").write(src)
        subprocess.run(["clang", "-x", "assembler", "-target", "amdgcn-amd-amdhsa", "-mcpu=gfx950", "-c", d + "/a.s", "-o", d + "/a.o"], check=True)
        dis = subprocess.run(["llvm-objdump", "-d", "--mcpu=gfx950", d + "/a.o"], capture_output=True, text=True).stdout
    sizes = []
    for l in dis.splitlines():
        m = re.search(r"// [0-9A-F]{12}: ((?:[0-9A-F]{8} ?)+)", l)
        if m: sizes.append((4 * len(m.group(1).split()), l.split()[0]))
    out = []; k = 0; addr = 0; cur = []
    nw = nn = 0
    for l in lines:
        if not l.startswith("    "):
            out.append(l); continue
        sz, mn = sizes[k]; k += 1
        if sz == 8 and addr % 64 == 60:
            if cur:
                i = cur.pop()
                t = out[i].split(None, 1)
                out[i] = "    " + t[0] + "_e64 " + t[1]; nw += 1
            else:
                out.append("    s_nop 0"); nn += 1
            addr += 4
        if addr % 64 == 0: cur = []
        if sz == 4 and mn.endswith("_e32") and not mn.startswith(("v_readfirstlane", "v_permlane", "v_accvgpr", "v_nop", "v_dot2c", "v_fmac")):
            cur.append(len(out))
        out.append(l); addr += sz
    assert k == len(sizes)
    return out

def main(out):
    A = Asm()
    kn = NAME + "_kernel"
    A.L.append(f".globl {kn}\n.p2align 8\n.type {kn},@function\n{kn}:\nL_CODE_BEGIN:")
    phase0(A); phase1_addr(A); phase2_stats(A); phase3_pack(A); phase4_kgen(A); phase5_kmfma(A)
    conv_addr(A); phase6_u(A); phase7_conv(A); phase8_g1(A); phase9_g2(A)
    stamp_flush(A)
    A.L.append("L_END:")
    A("s_endpgm")
    A.L.append("L_CODE_END:")
    if "noalign" not in OPT:
        A.L = align_pass([x for l in A.L for x in l.split("\n")])
    hdr = open("cdna_kernels/%s.s.ref" % NAME).read().split("; Override")[0]
    hdr += f"; @launch grid=(256,1,1) block=(256,1,1) lds={LDS_TOTAL}\n"
    hdr += '.amdgcn_target "amdgcn-amd-amdhsa--gfx950"\n.text\n'
    s = hdr + A.text() + f""".section .rodata,"a"
.p2align 6
.amdhsa_kernel {kn}
  .amdhsa_next_free_vgpr 512
  .amdhsa_next_free_sgpr 102
  .amdhsa_accum_offset 256
  .amdhsa_group_segment_fixed_size 0
  .amdhsa_kernarg_size 120
  .amdhsa_user_sgpr_count 2
  .amdhsa_user_sgpr_kernarg_segment_ptr 1
  .amdhsa_system_sgpr_workgroup_id_x 1
.end_amdhsa_kernel
"""
    open(out, "w").write(s)

if __name__ == "__main__":
    main(sys.argv[1] if len(sys.argv) > 1 else "cdna_kernels/%s.s" % NAME)
```
